```python
import torch

def _softmax(x, axis=-1):
    return torch.softmax(x, dim=axis)
def _gelu(x):
    return torch.nn.functional.gelu(x, approximate="tanh")
def _silu(x):
    return torch.nn.functional.silu(x)
def _sigmoid(x):
    return torch.sigmoid(x)
def _layernorm(x, axis=-1, eps=1e-5):
    m = x.mean(dim=axis, keepdim=True)
    v = x.var(dim=axis, keepdim=True, unbiased=False)
    return (x - m) / torch.sqrt(v + eps)
def _scatter_add(tgt, idx, src, axis=0):
    return tgt.clone().index_add_(axis, idx, src)
def _segment_sum(src, seg, n):
    out = torch.zeros((n,) + src.shape[1:], dtype=src.dtype)
    return out.index_add_(0, seg, src)
def _pad(x, pw):
    flat = tuple(v for pair in reversed(pw) for v in pair)
    return torch.nn.functional.pad(x, flat)

kernel_name = 'standalone__gqa_block_cached__near_ridge'

def setup_inputs():

    _w = (lambda a: (lambda t: t.to(torch.bfloat16) if t.is_floating_point() else t)(torch.as_tensor(a)))
    B, Sq, D = 16, 96, 576
    Hq, Hkv, Sk, Dh = 32, 16, 1024, 128
    assert Hq % Hkv == 0, (Hq, Hkv)
    return {
        "x": _w((lambda *s: torch.randn(*s, dtype=torch.bfloat16) * 0.8)(B, Sq, D)),
        "k_cache": _w((lambda *s: torch.randn(*s, dtype=torch.bfloat16) * 0.8)(B, Hkv, Sk, Dh)),
        "v_cache": _w((lambda *s: torch.randn(*s, dtype=torch.bfloat16) * 0.05)(B, Hkv, Sk, Dh)),
        "wq": _w((lambda *s: torch.randn(*s, dtype=torch.bfloat16) * 0.8)(D, Hq * Dh) * (D ** -0.5)),
        "wo": _w((lambda *s: torch.randn(*s, dtype=torch.bfloat16) * 0.05)(Hq * Dh, D) * ((Hq * Dh) ** -0.5)),
    }

def reference(x, k_cache, v_cache, wq, wo):
    B, Sq, D = x.shape
    Hq, Dh = 32, 128
    Hkv = k_cache.shape[1]
    rep = Hq // Hkv
    q = (lambda x, *d: x.permute(*d))((x @ wq).reshape(B, Sq, Hq, Dh), 0, 2, 1, 3)
    k = (lambda x, n, axis: torch.repeat_interleave(x, n, dim=axis))(k_cache, rep, axis=1)
    v = (lambda x, n, axis: torch.repeat_interleave(x, n, dim=axis))(v_cache, rep, axis=1)
    scores = torch.einsum("bhqd,bhkd->bhqk", q, k) * (Dh ** -0.5)
    p = _softmax(scores, axis=-1)
    o = torch.einsum("bhqk,bhkd->bhqd", p, v)
    return (lambda x, *d: x.permute(*d))(o, 0, 2, 1, 3).reshape(B, Sq, Hq * Dh) @ wo
```

```python
import re

def vr(base, n=1):
    return f"v{base}" if n == 1 else f"v[{base}:{base+n-1}]"
def sr(base, n=1):
    return f"s{base}" if n == 1 else f"s[{base}:{base+n-1}]"
def regs(prefix, base, n=1):
    return {f"{prefix}{base+i}" for i in range(n)}

_tok = re.compile(r'^(v|s|a)(\d+)$|^(v|s|a)\[(\d+):(\d+)\]$')
def opregs(tok):
    tok = tok.strip()
    if tok.startswith('-'): tok = tok[1:]
    if tok.startswith('abs(') : tok = tok[4:-1]
    m = _tok.match(tok)
    if m:
        if m.group(1): return {f"{m.group(1)}{m.group(2)}"}
        return {f"{m.group(3)}{i}" for i in range(int(m.group(4)), int(m.group(5))+1)}
    if tok in ('vcc', 'exec', 'm0', 'scc'): return {tok}
    if tok in ('vcc_lo','vcc_hi'): return {'vcc'}
    if tok in ('exec_lo','exec_hi'): return {'exec'}
    return set()

class I:
    __slots__ = ('text','kind','rd','wr','cost','tag')
    def __init__(self, text, kind, rd=(), wr=(), cost=1, tag=None):
        self.text, self.kind, self.rd, self.wr, self.cost, self.tag = text, kind, set(rd), set(wr), cost, tag
    def __repr__(self): return self.text

TRANS = ('v_exp_f32','v_log_f32','v_rcp_f32','v_rsq_f32','v_sqrt_f32','v_sin_f32','v_cos_f32')

def parse(text, tag=None):
    t = text.strip()
    if t.endswith(':'): return I(t, 'label', tag=tag)
    parts = t.split(None, 1)
    op = parts[0]
    rest = parts[1] if len(parts) > 1 else ''
    ops = [o.strip() for o in rest.split(',')] if rest else []
    mods = ''
    if ops:
        last = ops[-1].split()
        if last:
            ops[-1] = last[0]; mods = ' '.join(last[1:])
    R = lambda idx: set().union(*[opregs(ops[i]) for i in idx if i < len(ops)]) if idx else set()
    allidx = list(range(len(ops)))
    if op.startswith('v_mfma'):
        return I(t, 'mfma', R([1,2,3]), R([0]), cost=2, tag=tag)
    if op.startswith('v_permlane'):
        return I(t, 'valu', R([0,1]), R([0,1]), tag=tag)
    if op.startswith('v_cmp'):
        w = R([0]); return I(t, 'valu', R([1,2]) , w, tag=tag)
    if op in ('v_readfirstlane_b32','v_readlane_b32'):
        return I(t, 'valu', R(allidx[1:]), R([0]), tag=tag)
    if op.startswith('v_cndmask'):
        rd = R(allidx[1:]);
        if len(ops) == 3: rd |= {'vcc'}
        return I(t, 'valu', rd, R([0]), tag=tag)
    if op.startswith('v_add_co') or op.startswith('v_addc_co'):
        return I(t, 'valu', R(allidx[2:]), R([0,1]), tag=tag)
    if op.startswith('v_fmac') or op.startswith('v_pk_fmac'):
        return I(t, 'valu', R(allidx), R([0]), tag=tag)
    if op.startswith('v_'):
        base = op.replace('_e32','').replace('_e64','')
        k = 'trans' if base in TRANS else 'valu'
        return I(t, k, R(allidx[1:]), R([0]), cost=2 if k == 'trans' else 1, tag=tag)
    if op.startswith('ds_read') :
        return I(t, 'ds_r', R(allidx[1:]), R([0]), tag=tag)
    if op.startswith('ds_write') or op.startswith('ds_add'):
        return I(t, 'ds_w', R(allidx), set(), tag=tag)
    if op.startswith('buffer_load') or op.startswith('global_load'):
        if ' lds' in (' ' + mods) or op.startswith('global_load_lds'):
            return I(t, 'dma', R(allidx) | {'m0'}, set(), tag=tag)
        return I(t, 'vload', R(allidx[1:]), R([0]), tag=tag)
    if op.startswith('buffer_store') or op.startswith('global_store'):
        return I(t, 'vstore', R(allidx), set(), tag=tag)
    if op.startswith('buffer_atomic') or op.startswith('global_atomic'):
        ret = 'sc0' in mods.split()
        if ret: return I(t, 'vload', R(allidx[1:]), R([0]), tag=tag)
        return I(t, 'vstore', R(allidx), set(), tag=tag)
    if op == 's_waitcnt': return I(t, 'wait', tag=tag)
    if op == 's_nop': return I(t, 'nop', cost=int(ops[0])+1, tag=tag)
    if op == 's_barrier': return I(t, 'barrier', tag=tag)
    if op.startswith('s_cbranch') or op in ('s_branch','s_setpc_b64','s_call_b64','s_endpgm','s_swappc_b64'):
        rd = set()
        if 'vcc' in op: rd = {'vcc'}
        if 'scc' in op: rd = {'scc'}
        if 'exec' in op: rd = {'exec'}
        if op == 's_setpc_b64': rd = R([0])
        return I(t, 'branch', rd, R([0]) if op == 's_call_b64' else (), tag=tag)
    if op.startswith('s_load') or op.startswith('s_memrealtime') or op.startswith('s_memtime'):
        return I(t, 'smem', R(allidx[1:]), R([0]), tag=tag)
    if op.startswith('s_cmp') or op.startswith('s_bitcmp'):
        return I(t, 'salu', R(allidx), {'scc'}, tag=tag)
    if op in ('s_setprio','s_sleep','s_sethalt'): return I(t, 'misc', tag=tag)
    if op.startswith('s_'):
        rd = R(allidx[1:])
        if op.startswith('s_cselect') or op.startswith('s_addc') or op.startswith('s_subb'): rd |= {'scc'}
        if op in ('s_addk_i32','s_mulk_i32'): rd |= R([0])
        wr = R([0]) | {'scc'} if not op.startswith('s_mov') and not op.startswith('s_mul') and not op.startswith('s_cselect') else R([0])
        if 'saveexec' in op: wr |= {'exec'}; rd |= {'exec'}
        return I(t, 'salu', rd, wr, tag=tag)
    raise ValueError('cannot parse: ' + text)

class Prog:
    def __init__(self): self.L = []
    def __call__(self, text, tag=None):
        for line in text.split('\n'):
            line = line.split(';')[0].strip()
            if line: self.L.append(parse(line, tag))
        return self
    def add(self, inst): self.L.append(inst); return self
    def extend(self, insts):
        for x in insts:
            self.L.append(x if isinstance(x, I) else parse(x))
    def text(self):
        out = []
        for x in self.L:
            out.append(x.text if x.kind == 'label' else '  ' + x.text)
        return '\n'.join(out)

def parse_wait(text):
    vm = re.search(r'vmcnt\((\d+)\)', text); lg = re.search(r'lgkmcnt\((\d+)\)', text)
    return (int(vm.group(1)) if vm else None, int(lg.group(1)) if lg else None)

def auto_wait(L, track_vm=True):
    out = []
    lg = []
    vm = []
    for x in L:
        need_lg = None; need_vm = None
        touched = x.rd | x.wr
        if x.kind not in ('wait','label','nop','barrier'):
            for i, w in enumerate(lg):
                if w & touched: need_lg = len(lg) - 1 - i
            if track_vm:
                for i, w in enumerate(vm):
                    if w & touched: need_vm = len(vm) - 1 - i
        if x.kind == 'smem':
            pass
        parts = []
        if need_vm is not None:
            n = min(need_vm, 63); parts.append(f'vmcnt({n})'); vm = vm[len(vm)-n:] if n else []
        if need_lg is not None:
            n = min(need_lg, 15); parts.append(f'lgkmcnt({n})'); lg = lg[len(lg)-n:] if n else []
        if parts:
            out.append(I('s_waitcnt ' + ' '.join(parts), 'wait', tag='auto'))
        if x.kind == 'wait':
            v, l = parse_wait(x.text)
            if v is not None: vm = vm[len(vm)-v:] if v and v < len(vm) else ([] if v == 0 else vm)
            if l is not None: lg = lg[len(lg)-l:] if l and l < len(lg) else ([] if l == 0 else lg)
        if x.kind == 'ds_r': lg.append(set(x.wr))
        elif x.kind == 'ds_w': lg.append(set())
        elif x.kind == 'vload': vm.append(set(x.wr))
        elif x.kind in ('vstore','dma'): vm.append(set())
        out.append(x)
    return out

def states(x):
    if x.kind == 'nop': return x.cost
    if x.kind == 'label': return 0
    return 1

def fix_hazards(L, verbose=False):
    out = []
    WIN = 24
    def dist_scan(cond):
        d = 0
        for y in reversed(out):
            if cond(y): return d
            d += states(y)
            if d > WIN: return None
        return None
    for x in L:
        need = 0; why = ''
        def req(cond, n, msg):
            nonlocal need, why
            d = dist_scan(cond)
            if d is not None and n - d > need:
                need = n - d; why = msg
        vrd = {r for r in x.rd if r[0] == 'v' and r != 'vcc'}
        vwr = {r for r in x.wr if r[0] == 'v' and r != 'vcc'}
        srd = {r for r in x.rd if r[0] == 's' and r != 'scc'} | ({'vcc'} & x.rd)
        isv = x.kind in ('valu','trans')
        if x.kind == 'mfma':
            req(lambda y: y.kind in ('valu','trans') and y.wr & vrd, 2, 'valu->mfma')
            ops = [o.strip() for o in x.text.split(None,1)[1].split(',')]
            D, A, B, C = (opregs(o) for o in ops[:4])
            req(lambda y: y.kind == 'mfma' and y.wr & (A | B), 8, 'mfma->mfma AB')
            req(lambda y: y.kind == 'mfma' and (y.wr & C) and y.wr != C, 6, 'mfma->mfma C overlap')
            req(lambda y: y.kind == 'mfma' and (y.wr & D) and y.wr != D, 6, 'mfma->mfma D overlap')
            if C != D:
                req(lambda y: y.kind == 'mfma' and y.wr == D, 6, 'mfma WAW')
            req(lambda y: y.kind in ('valu','trans','salu') and 'exec' in y.wr, 4, 'exec->mfma')
        if isv or x.kind in ('vload','vstore','dma','ds_r','ds_w'):
            req(lambda y: y.kind == 'mfma' and y.wr & (vrd | vwr), 8, 'mfma->valu/mem')
        if isv:
            def war_c(y):
                if y.kind != 'mfma': return False
                ops = [o.strip() for o in y.text.split(None,1)[1].split(',')]
                return bool(opregs(ops[3]) & vwr)
            req(war_c, 3, 'mfma C WAR')
            req(lambda y: y.kind == 'trans' and y.wr & vrd, 1, 'trans->valu')
            req(lambda y: y.kind in ('valu','trans') and (y.wr & srd), 2, 'valu sgpr->valu')
            if x.text.startswith('v_permlane'):
                req(lambda y: y.kind in ('valu','trans') and y.wr & vrd, 2, 'valu->permlane')
            if x.text.startswith('v_readfirstlane') or x.text.startswith('v_readlane'):
                req(lambda y: y.kind in ('valu','trans') and y.wr & vrd, 1, 'valu->readlane')
            if 'dpp' in x.text or 'row_' in x.text:
                req(lambda y: y.kind in ('valu','trans') and y.wr & vrd, 2, 'valu->dpp')
            req(lambda y: y.kind == 'vstore' and ('x4' in y.text or 'x3' in y.text) and y.rd & vwr, 2, 'store WAR')
        if x.kind in ('vload','vstore','dma'):
            req(lambda y: y.kind in ('valu','trans') and (y.wr & srd), 5, 'valu sgpr->vmem')
            if 'm0' in x.rd:
                req(lambda y: y.kind == 'salu' and 'm0' in y.wr, 1, 'm0->dma')
        if x.kind in ('ds_r','vload'):
            req(lambda y: y.kind == 'vstore' and ('x4' in y.text or 'x3' in y.text) and y.rd & vwr, 1, 'store WAR (mem write)')
        if x.kind == 'salu' or x.kind == 'branch':
            req(lambda y: y.kind in ('valu','trans') and (y.wr & (x.rd - {'scc'})), 2, 'valu sgpr->salu')
        if need > 0:
            if verbose: print(f'hazard pad {need} before {x.text} ({why})')
            while need > 0:
                n = min(need, 16)
                out.append(I(f's_nop {n-1}', 'nop', cost=n, tag='haz'))
                need -= n
        out.append(x)
    return out

def interleave(mfmas, pinned, stream, lead=None):
    out = []
    n = len(mfmas)
    for x in pinned.get(-1, []): out.append(x)
    tot = sum(x.cost for x, _ in stream) + sum(x.cost for k, v in pinned.items() if k >= 0 for x in v)
    done = 0; si = 0
    for i, m in enumerate(mfmas):
        out.append(m)
        for x in pinned.get(i, []):
            out.append(x); done += x.cost
        target = tot * (i + 1) / n
        while si < len(stream) and stream[si][1] <= i and (done + stream[si][0].cost / 2.0 <= target or i == n - 1):
            out.append(stream[si][0]); done += stream[si][0].cost; si += 1
    while si < len(stream):
        out.append(stream[si][0]); si += 1
    return out
```

```python
import sys
sys.path.insert(0, 'gen')
from ir import *

NAME = 'standalone__gqa_block_cached__near_ridge'
BLK = 1056
KSLOT = 8*BLK; KRING = 0
VSLOT = 8*BLK; VRING = KRING + 4*KSLOT
WSLOT = 16*BLK; WRING = VRING + 4*VSLOT
XSLOT = 6144;  XRING = WRING + 4*WSLOT
LDS_A = XRING + 4*XSLOT
assert LDS_A <= 163840
OA_BYTES = 32*128*3*1024
WB_OFF = OA_BYTES
WB_BYTES = 8*64*9*1024
S_K, S_V, S_X, S_WQ, S_WO, S_OA, S_WB = 8, 12, 16, 20, 24, 28, 32
P_X, P_K, P_V, P_WQ, P_WO, P_OUT, P_DBG, P_WS = 36, 38, 40, 42, 44, 46, 48, 50
S_B, S_HKV, S_W, S_T0, S_T1, S_T2, S_T3 = 52, 53, 54, 55, 56, 57, 58
S_FLAG, S_DC, S_SO = 60, 61, 59
S_RET = 62
def O(dt, qt): return 4*(dt*3+qt)
def Q(qt, ks): return 96 + 4*(qt*4+ks)
def S(buf, qt): return 144 + 24*buf + 8*qt
def M(qt): return 192 + 4*qt
def Lr(qt): return 204 + 4*qt
ONES = 216
def FR(n): return 220 + 4*(n % 4)
V_KA, V_VA = 236, 237
def MX(qt): return 238 + qt
V_TMP = 241
def F(qt): return 242 + qt
V_WA, V_XA, V_OST = 245, 246, 247
V_C0 = 248
MF = 'v_mfma_f32_16x16x32_bf16'
QSCALE = 0x3e0293ee
import struct, math
QSCALE = struct.unpack('<I', struct.pack('<f', math.log2(math.e)/math.sqrt(128.0)))[0]
THRESH = 0x41000000

def mf(D, A, B, C):
    c = vr(C, 4) if isinstance(C, int) else C
    return parse(f'{MF} {vr(D,4)}, {vr(A,4)}, {vr(B,4)}, {c}')

def srd(p, s, base_lo, base_hi, nbytes):
    p(f's_mov_b32 s{s}, s{base_lo}')
    p(f's_and_b32 s{s+1}, s{base_hi}, 0xffff')
    p(f's_mov_b32 s{s+2}, {nbytes}')
    p(f's_mov_b32 s{s+3}, 0x20000')

def add64(p, lo, hi, off_s):
    p(f's_add_u32 s{lo}, s{lo}, s{off_s}')
    p(f's_addc_u32 s{hi}, s{hi}, 0')

def common_prologue(p, exit_label):
    p('s_cmp_ge_u32 s2, 256')
    p(f's_cbranch_scc1 {exit_label}')
    p(f's_load_dwordx16 s[{P_X}:{P_X+15}], s[0:1], 0')
    p('v_lshrrev_b32 v1, 6, v0')
    p('v_and_b32 v0, 63, v0')
    p(f'v_readfirstlane_b32 s{S_W}, v1')

def gen_A():
    p = Prog()
    common_prologue(p, 'LA_done')
    p(f's_and_b32 s{S_T0}, s2, 7')
    p(f's_lshr_b32 s{S_T1}, s2, 3')
    p(f's_and_b32 s{S_B}, s{S_T0}, 1')
    p(f's_lshl_b32 s{S_B}, s{S_B}, 3')
    p(f's_and_b32 s{S_T2}, s{S_T1}, 7')
    p(f's_add_u32 s{S_B}, s{S_B}, s{S_T2}')
    p(f's_mul_i32 s{S_DC}, s{S_T2}, 18')
    p(f's_lshr_b32 s{S_DC}, s{S_DC}, 3')
    p(f's_lshr_b32 s{S_HKV}, s{S_T0}, 1')
    p(f's_lshl_b32 s{S_HKV}, s{S_HKV}, 2')
    p(f's_lshr_b32 s{S_T2}, s{S_T1}, 3')
    p(f's_add_u32 s{S_HKV}, s{S_HKV}, s{S_T2}')
    p('s_waitcnt lgkmcnt(0)')
    p(f's_lshl_b32 s{S_T0}, s{S_B}, 4')
    p(f's_add_u32 s{S_T0}, s{S_T0}, s{S_HKV}')
    p(f's_lshl_b32 s{S_T0}, s{S_T0}, 18')
    add64(p, P_K, P_K+1, S_T0); add64(p, P_V, P_V+1, S_T0)
    srd(p, S_K, P_K, P_K+1, 262144); srd(p, S_V, P_V, P_V+1, 262144)
    p(f's_mul_i32 s{S_T0}, s{S_B}, 110592')
    add64(p, P_X, P_X+1, S_T0)
    srd(p, S_X, P_X, P_X+1, 110592)
    p(f's_lshl_b32 s{S_T0}, s{S_HKV}, 9')
    add64(p, P_WQ, P_WQ+1, S_T0)
    srd(p, S_WQ, P_WQ, P_WQ+1, 0)
    p(f's_sub_u32 s{S_WQ+2}, 4718592, s{S_T0}')
    srd(p, S_WO, P_WO, P_WO+1, 4718592)
    srd(p, S_OA, P_WS, P_WS+1, OA_BYTES)
    p(f's_add_u32 s{P_WS}, s{P_WS}, {WB_OFF}')
    p(f's_addc_u32 s{P_WS+1}, s{P_WS+1}, 0')
    srd(p, S_WB, P_WS, P_WS+1, WB_BYTES)
    p(f's_cmp_ge_u32 s{S_W}, 6'); p('s_cbranch_scc1 LA_hw')
    p(f's_cmp_ge_u32 s{S_W}, 4'); p('s_cbranch_scc1 LA_hk')
    gen_C(p)
    p('s_branch LA_done')
    gen_subs(p)
    p('LA_hk:')
    gen_HK(p)
    p('s_branch LA_done')
    p('LA_hw:')
    gen_HW(p)
    p('LA_done:')
    p('s_endpgm')
    return p

def gen_C(p):
    c = Prog()
    c('v_lshrrev_b32 v1, 4, v0')
    c('v_and_b32 v2, 15, v0')
    c('v_bfe_u32 v3, v0, 2, 2')
    c('v_and_b32 v4, 3, v0')
    c(f's_lshr_b32 s{S_T0}, s{S_W}, 1')
    c(f's_and_b32 s{S_T1}, s{S_W}, 1')
    c('v_cmp_gt_u32 vcc, 4, v2')
    c('v_subrev_u32 v5, 4, v2')
    c('v_cndmask_b32 v5, v5, v2, vcc')
    c('v_cmp_lt_u32 vcc, 11, v2')
    c('v_subrev_u32 v6, 8, v2')
    c('v_cndmask_b32 v5, v5, v6, vcc')
    c('v_subrev_u32 v6, 4, v2')
    c('v_cmp_gt_u32 vcc, 8, v6')
    c('v_cndmask_b32 v6, 0, 1, vcc')
    c(f'v_mul_u32_u24 v5, {BLK}, v5')
    c('v_lshlrev_b32 v6, 8, v6')
    c('v_lshlrev_b32 v7, 4, v1')
    c(f'v_add3_u32 v{V_KA}, v5, v6, v7')
    if KRING: c(f'v_add_u32 v{V_KA}, {KRING}, v{V_KA}')
    c('v_and_b32 v5, 1, v1')
    c('v_lshl_add_u32 v5, v5, 2, v3')
    c(f'v_mul_u32_u24 v5, {BLK}, v5')
    c('v_lshrrev_b32 v6, 1, v1')
    c('v_lshlrev_b32 v7, 8, v6')
    c('v_lshlrev_b32 v8, 3, v4')
    c(f'v_add3_u32 v{V_VA}, v5, v7, v8')
    c(f'v_add_u32 v{V_VA}, {VRING}, v{V_VA}')
    c('v_lshlrev_b32 v7, 9, v6')
    c(f'v_add3_u32 v{V_WA}, v5, v7, v8')
    c(f's_mul_i32 s{S_T2}, s{S_T0}, {8*BLK}')
    c(f's_add_u32 s{S_T2}, s{S_T2}, {WRING}')
    c(f'v_add_u32 v{V_WA}, s{S_T2}, v{V_WA}')
    c('v_lshrrev_b32 v5, 3, v2')
    c('v_lshlrev_b32 v5, 1, v5')
    c('v_xor_b32 v5, v5, v1')
    c('v_lshlrev_b32 v5, 4, v5')
    c('v_lshl_add_u32 v5, v2, 6, v5')
    c(f's_mul_i32 s{S_T2}, s{S_T1}, 3072')
    c(f's_add_u32 s{S_T2}, s{S_T2}, {XRING}')
    c(f'v_add_u32 v{V_XA}, s{S_T2}, v5')
    c(f's_lshl_b32 s{S_T2}, s{S_B}, 1')
    c(f's_add_u32 s{S_T2}, s{S_T2}, s{S_T1}')
    c(f's_lshl_b32 s{S_T2}, s{S_T2}, 7')
    c(f's_lshl_b32 s{S_T3}, s{S_HKV}, 1')
    c(f's_add_u32 s{S_T3}, s{S_T3}, s{S_T0}')
    c(f's_lshl_b32 s{S_T3}, s{S_T3}, 2')
    c(f's_add_u32 s{S_T2}, s{S_T2}, s{S_T3}')
    c(f's_mul_i32 s{S_T2}, s{S_T2}, 3072')
    c(f'v_lshlrev_b32 v5, 4, v0')
    c(f'v_add_u32 v{V_OST}, s{S_T2}, v5')
    c(f'v_mov_b32 v{V_C0}, {QSCALE:#x}')
    c(f'v_mov_b32 v{V_C0+1}, {QSCALE:#x}')
    for i in range(4): c(f'v_mov_b32 v{ONES+i}, 0x3f803f80')
    c(f's_mov_b32 s{S_FLAG}, 0')
    for i in range(96): c(f'v_mov_b32 v{i}, 0')
    def bufA(s, dt): return (96 if s % 2 == 0 else 140) + 4*dt
    def bufB(s, qt): return (128 if s % 2 == 0 else 172) + 4*qt
    def reads(s):
        slot = s % 4
        out = []
        for qt in range(3):
            out.append(parse(f'ds_read_b128 {vr(bufB(s,qt),4)}, v{V_XA} offset:{slot*XSLOT + qt*1024}'))
        for dt in range(8):
            out.append(parse(f'ds_read_b64_tr_b16 {vr(bufA(s,dt),2)}, v{V_WA} offset:{slot*WSLOT + dt*32}'))
            out.append(parse(f'ds_read_b64_tr_b16 {vr(bufA(s,dt)+2,2)}, v{V_WA} offset:{slot*WSLOT + dt*32 + 256}'))
        return out
    c('s_barrier')
    c.extend(reads(0))
    for s in range(18):
        c('s_waitcnt lgkmcnt(0)')
        if s < 17: c('s_barrier')
        mfs = [mf(O(dt,qt), bufA(s,dt), bufB(s,qt), O(dt,qt)) for dt in range(8) for qt in range(3)]
        stream = [(x, 0) for x in reads(s+1)] if s < 17 else []
        c.extend(interleave(mfs, {}, stream))
    for qt in range(3):
        for ks in range(4):
            a, b, f = O(2*ks, qt), O(2*ks+1, qt), Q(qt, ks)
            for base in (a, b):
                c(f'v_pk_mul_f32 {vr(base,2)}, {vr(base,2)}, {vr(V_C0,2)}')
                c(f'v_pk_mul_f32 {vr(base+2,2)}, {vr(base+2,2)}, {vr(V_C0,2)}')
            c(f'v_cvt_pk_bf16_f32 v{f}, v{a}, v{a+1}')
            c(f'v_cvt_pk_bf16_f32 v{f+1}, v{a+2}, v{a+3}')
            c(f'v_cvt_pk_bf16_f32 v{f+2}, v{b}, v{b+1}')
            c(f'v_cvt_pk_bf16_f32 v{f+3}, v{b+2}, v{b+3}')
    for qt in range(3):
        for ks in range(4):
            f = Q(qt, ks)
            c(f'v_permlane32_swap_b32 v{f}, v{f+2}')
            c(f'v_permlane32_swap_b32 v{f+1}, v{f+3}')
    for qt in range(3):
        for ks in range(4):
            f = Q(qt, ks)
            c(f'v_permlane16_swap_b32 v{f}, v{f+2}')
            c(f'v_permlane16_swap_b32 v{f+1}, v{f+3}')
    def kread(tile, n):
        kt, ks = n // 4, n % 4
        return [parse(f'ds_read_b128 {vr(FR(n),4)}, v{V_KA} offset:{(tile%4)*KSLOT + kt*512 + ks*64}')]
    def vread(tile, dt):
        o = (tile % 4)*VSLOT + dt*32
        return [parse(f'ds_read_b64_tr_b16 {vr(FR(8+dt),2)}, v{V_VA} offset:{o}'),
                parse(f'ds_read_b64_tr_b16 {vr(FR(8+dt)+2,2)}, v{V_VA} offset:{o+512}')]
    def qk_mfmas(buf, first):
        out = []
        for n in range(8):
            kt, ks = n // 4, n % 4
            for qt in range(3):
                D = S(buf, qt) + 4*kt
                Cc = ('0' if first else M(qt)) if ks == 0 else D
                out.append(mf(D, FR(n), Q(qt, ks), Cc))
        return out
    def maxchain(buf):
        out = []
        for qt in range(3):
            s = S(buf, qt)
            out.append(parse(f'v_max3_f32 v{MX(qt)}, v{s}, v{s+1}, v{s+2}'))
        for qt in range(3):
            s = S(buf, qt)
            out.append(parse(f'v_max3_f32 v{MX(qt)}, v{MX(qt)}, v{s+3}, v{s+4}'))
        for qt in range(3):
            s = S(buf, qt)
            out.append(parse(f'v_max3_f32 v{MX(qt)}, v{MX(qt)}, v{s+5}, v{s+6}'))
        for qt in range(3):
            s = S(buf, qt)
            out.append(parse(f'v_max_f32 v{MX(qt)}, v{MX(qt)}, v{s+7}'))
        return out
    def exps(buf, lo, hi):
        return [parse(f'v_exp_f32 v{S(buf, n//8)+n%8}, v{S(buf, n//8)+n%8}') for n in range(lo, hi)]
    def cvts(buf, qt):
        s = S(buf, qt)
        return [parse(f'v_cvt_pk_bf16_f32 v{s+k}, v{s+2*k}, v{s+2*k+1}') for k in range(4)]
    c('s_barrier')
    for n in range(3): c.extend(kread(0, n))
    mfs = qk_mfmas(0, True)
    pin = {3*n: kread(0, n+3) for n in range(5)}
    c.extend(interleave(mfs, pin, []))
    c.extend(maxchain(0))
    for qt in range(3):
        c(f'''v_mov_b32 v{V_TMP}, v{MX(qt)}
        v_permlane32_swap_b32 v{MX(qt)}, v{V_TMP}
        v_max_f32 v{MX(qt)}, v{MX(qt)}, v{V_TMP}
        v_mov_b32 v{V_TMP}, v{MX(qt)}
        v_permlane16_swap_b32 v{MX(qt)}, v{V_TMP}
        v_max_f32 v{MX(qt)}, v{MX(qt)}, v{V_TMP}''')
        for r in range(8): c(f'v_sub_f32 v{S(0,qt)+r}, v{S(0,qt)+r}, v{MX(qt)}')
        for r in range(4): c(f'v_sub_f32 v{M(qt)+r}, 0, v{MX(qt)}')
    c.extend(exps(0, 0, 12))

    uid = [0]
    def iteration(t, first=False, last=False):
        cur, nxt = t % 2, (t+1) % 2
        c('s_waitcnt lgkmcnt(0)')
        c('s_barrier')
        sm2 = exps(cur, 12, 16) + cvts(cur, 0) + exps(cur, 16, 20) + cvts(cur, 1) + exps(cur, 20, 24) + cvts(cur, 2)
        if not last:
            for n in range(3): c.extend(kread(t+1, n))
            head, sm2 = sm2[:6], sm2[6:]
            c.extend(head)
            mfs = qk_mfmas(nxt, False)
            pin = {3*n: kread(t+1, n+3) for n in range(5)}
            for k in range(3): pin[15+3*k] = vread(t, k)
            c.extend(interleave(mfs, pin, [(x, 0) for x in sm2]))
        else:
            for k in range(3): c.extend(vread(t, k))
            c.extend(sm2)
        Cz = '0' if first else None
        mfs = [mf(Lr(qt), ONES, S(cur, qt), Cz or Lr(qt)) for qt in range(3)]
        for dt in range(8):
            for qt in range(3):
                mfs.append(mf(O(dt,qt), FR(8+dt), S(cur, qt), Cz or O(dt,qt)))
        pin = {}
        for dt in range(3, 8): pin[3 + 3*(dt-3) + 0] = vread(t, dt)
        if not last:
            uid[0] += 1
            u = uid[0]
            chain = maxchain(nxt) + [parse(f'v_max3_f32 v{V_TMP}, v{MX(0)}, v{MX(1)}, v{MX(2)}'),
                                     parse(f'v_cmp_lt_f32 vcc, {THRESH:#x}, v{V_TMP}')]
            br = [parse(f's_cbranch_vccnz LA_rare{u}'), parse(f'LA_back{u}:')]
            stream = [(x, 0) for x in chain] + [(x, 0) for x in br] + [(x, 0) for x in exps(nxt, 0, 12)]
            c.extend(interleave(mfs, pin, stream))
            c(f's_cmp_lg_u32 s{S_FLAG}, 0')
            c(f's_cbranch_scc1 LA_resc{u}')
            c(f'LA_rback{u}:')
            stubs.append((u, nxt))
        else:
            c.extend(interleave(mfs, pin, []))
    global stubs
    stubs = []
    iteration(0, first=True)
    for t in range(1, 4): iteration(t)
    c(f's_mov_b32 s{S_T0}, 6')
    c('LA_loop:')
    for t in range(4, 8): iteration(t)
    c(f's_sub_u32 s{S_T0}, s{S_T0}, 1')
    c(f's_cmp_lg_u32 s{S_T0}, 0')
    c('s_cbranch_scc1 LA_loop')
    for t in range(28, 31): iteration(t)
    iteration(31, last=True)
    for qt in range(3): c(f'v_rcp_f32 v{MX(qt)}, v{Lr(qt)}')
    n = 0
    for ks in range(4):
        for qt in range(3):
            a, b = O(2*ks, qt), O(2*ks+1, qt)
            f = 96 + 4*(n % 12); n += 1
            for base in (a, b):
                for r in range(4): c(f'v_mul_f32 v{base+r}, v{base+r}, v{MX(qt)}')
            c(f'v_cvt_pk_bf16_f32 v{f}, v{a}, v{a+1}')
            c(f'v_cvt_pk_bf16_f32 v{f+1}, v{a+2}, v{a+3}')
            c(f'v_cvt_pk_bf16_f32 v{f+2}, v{b}, v{b+1}')
            c(f'v_cvt_pk_bf16_f32 v{f+3}, v{b+2}, v{b+3}')
            off = (ks*3 + qt)*1024
            c(f's_mov_b32 s{S_T1}, {off}')
            c(f'buffer_store_dwordx4 {vr(f,4)}, v{V_OST}, s[{S_OA}:{S_OA+3}], s{S_T1} offen')
    L = auto_wait(c.L)
    L = fix_hazards(L)
    p.extend(L)

def gen_subs(p):
    s = Prog()
    for u, buf in stubs:
        s(f'LA_rare{u}:')
        s(f's_call_b64 s[{S_RET}:{S_RET+1}], LA_rare_sub{buf}')
        s(f's_branch LA_back{u}')
        s(f'LA_resc{u}:')
        s(f's_call_b64 s[{S_RET}:{S_RET+1}], LA_resc_sub')
        s(f's_branch LA_rback{u}')
    p.extend(s.L)
    for buf in range(2):
        s = Prog()
        s(f'LA_rare_sub{buf}:')
        s('s_nop 7')
        for qt in range(3):
            s(f'''v_mov_b32 v{V_TMP}, v{MX(qt)}
            v_permlane32_swap_b32 v{MX(qt)}, v{V_TMP}
            v_max_f32 v{MX(qt)}, v{MX(qt)}, v{V_TMP}
            v_mov_b32 v{V_TMP}, v{MX(qt)}
            v_permlane16_swap_b32 v{MX(qt)}, v{V_TMP}
            v_max_f32 v{MX(qt)}, v{MX(qt)}, v{V_TMP}
            v_max_f32 v{MX(qt)}, 0, v{MX(qt)}''')
            for r in range(8): s(f'v_sub_f32 v{S(buf,qt)+r}, v{S(buf,qt)+r}, v{MX(qt)}')
            for r in range(4): s(f'v_sub_f32 v{M(qt)+r}, v{M(qt)+r}, v{MX(qt)}')
            s(f'v_exp_f32 v{F(qt)}, -v{MX(qt)}')
        s(f's_mov_b32 s{S_FLAG}, 1')
        s('s_nop 1')
        s(f's_setpc_b64 s[{S_RET}:{S_RET+1}]')
        p.extend(fix_hazards(s.L))
    s = Prog()
    s('LA_resc_sub:')
    s('s_nop 7')
    s('s_nop 7')
    for qt in range(3):
        for dt in range(8):
            for r in range(4): s(f'v_mul_f32 v{O(dt,qt)+r}, v{O(dt,qt)+r}, v{F(qt)}')
        for r in range(4): s(f'v_mul_f32 v{Lr(qt)+r}, v{Lr(qt)+r}, v{F(qt)}')
    s(f's_mov_b32 s{S_FLAG}, 0')
    s('s_nop 1')
    s(f's_setpc_b64 s[{S_RET}:{S_RET+1}]')
    p.extend(fix_hazards(s.L))

def gen_HK(p):
    h = Prog()
    h(f's_sub_u32 s{S_T0}, s{S_W}, 4')
    h('v_lshrrev_b32 v1, 4, v0')
    h('v_and_b32 v2, 15, v0')
    h('v_lshlrev_b32 v2, 4, v2')
    h('v_lshrrev_b32 v3, 1, v1')
    h('v_and_b32 v4, 1, v1')
    h(f's_mul_i32 s{S_T1}, s{S_T0}, 12')
    h(f's_lshl_b32 s{S_T2}, s{S_T0}, 2')
    h(f's_add_u32 s{S_T3}, s{S_T2}, 4')
    h(f'v_mov_b32 v5, s{S_T1}')
    h(f'v_mov_b32 v6, s{S_T3}')
    h('v_cmp_eq_u32 vcc, 1, v4')
    h('v_cndmask_b32 v5, v5, v6, vcc')
    h('v_lshl_add_u32 v5, v3, 4, v5')
    h('v_lshl_add_u32 v10, v5, 8, v2')
    h('v_lshlrev_b32 v5, 3, v1')
    h(f'v_add_u32 v5, s{S_T2}, v5')
    h('v_lshl_add_u32 v11, v5, 8, v2')
    h(f's_mul_i32 s{S_T3}, s{S_T0}, {4*BLK}')
    def issue(srdn, voff, ring, slotsz, tile):
        for bl in range(4):
            h(f's_add_u32 m0, s{S_T3}, {ring + (tile%4)*slotsz + bl*BLK}')
            h(f's_mov_b32 s{S_SO}, {tile*8192 + bl*256}')
            h(f'buffer_load_dwordx4 v{voff}, s[{srdn}:{srdn+3}], s{S_SO} offen nt lds')
    groups = {}
    def group(tau):
        n = 0
        if 0 <= tau+4 <= 31: issue(S_K, 10, KRING, KSLOT, tau+4); n += 4
        if 0 <= tau+3 <= 31: issue(S_V, 11, VRING, VSLOT, tau+3); n += 4
        groups[tau] = n
    for tau in range(-4, 0): group(tau)
    for _ in range(1 + 17): h('s_barrier')
    h(f's_waitcnt vmcnt({groups[-3]+groups[-2]+groups[-1]})')
    h('s_barrier')
    h(f's_waitcnt vmcnt({groups[-2]+groups[-1]})')
    for t in range(32):
        h('s_barrier')
        if t < 31:
            group(t)
            h(f's_waitcnt vmcnt({groups[t-1]+groups[t]})')
    p.extend(fix_hazards(h.L))

def gen_HW(p):
    h = Prog()
    h(f's_sub_u32 s{S_T0}, s{S_W}, 6')
    h('v_lshrrev_b32 v1, 4, v0')
    h('v_and_b32 v2, 15, v0')
    h('v_lshlrev_b32 v2, 4, v2')
    h('v_and_b32 v3, 1, v1')
    h('v_lshlrev_b32 v3, 2, v3')
    h('v_lshrrev_b32 v4, 1, v1')
    h('v_lshl_add_u32 v3, v4, 4, v3')
    h('v_lshl_add_u32 v3, v3, 13, v2')
    h(f's_lshl_b32 s{S_T1}, s{S_T0}, 8')
    h(f'v_add_u32 v10, s{S_T1}, v3')
    h('v_lshrrev_b32 v3, 2, v0')
    h('v_and_b32 v4, 3, v0')
    h('v_lshrrev_b32 v5, 3, v3')
    h('v_lshlrev_b32 v5, 1, v5')
    h('v_xor_b32 v4, v4, v5')
    h('v_lshlrev_b32 v4, 4, v4')
    h('v_mul_u32_u24 v3, 1152, v3')
    h(f's_mul_i32 s{S_T1}, s{S_T0}, {3*16*1152}')
    h(f'v_add3_u32 v11, v3, v4, s{S_T1}')
    h(f's_mul_i32 s{S_T2}, s{S_T0}, {8*BLK}')
    h(f's_mul_i32 s{S_T3}, s{S_T0}, 3072')
    def step(s):
        slot = s % 4
        h(f's_lshl_b32 s{S_T1}, s{S_DC}, 18')
        h(f's_lshl_b32 s64, s{S_DC}, 6')
        for k in range(3):
            h(f's_add_u32 m0, s{S_T3}, {XRING + slot*XSLOT + k*1024}')
            h(f's_add_u32 s{S_SO}, s64, {k*16*1152}')
            h(f'buffer_load_dwordx4 v11, s[{S_X}:{S_X+3}], s{S_SO} offen lds')
        for b in range(8):
            h(f's_add_u32 m0, s{S_T2}, {WRING + slot*WSLOT + b*BLK}')
            h(f's_add_u32 s{S_SO}, s{S_T1}, {((b & 3) + 8*(b >> 2))*8192}')
            h(f'buffer_load_dwordx4 v10, s[{S_WQ}:{S_WQ+3}], s{S_SO} offen lds')
        h(f's_add_u32 s{S_DC}, s{S_DC}, 1')
        h(f's_cmp_eq_u32 s{S_DC}, 18')
        h(f's_cselect_b32 s{S_DC}, 0, s{S_DC}')
    for s in range(4): step(s)
    h('s_waitcnt vmcnt(33)')
    h('s_barrier')
    h('s_waitcnt vmcnt(22)')
    for s in range(17):
        h('s_barrier')
        if s + 4 <= 17: step(s+4)
        newer = max(0, min(17, s+4) - (s+2))
        if s + 2 <= 17: h(f's_waitcnt vmcnt({11*newer})')
    h('s_barrier')
    h(f's_lshl_b32 s{S_T1}, s2, 1')
    h(f's_add_u32 s{S_T1}, s{S_T1}, s{S_T0}')
    h(f's_and_b32 s64, s{S_T1}, 7')
    h(f's_lshr_b32 s65, s{S_T1}, 3')
    STG = WRING
    h(f's_mul_i32 s66, s{S_T0}, 9216')
    h(f's_add_u32 s66, s66, {STG}')
    h(f's_mul_i32 s67, s65, {64*1152}')
    h(f's_mul_i32 s68, s64, 144')
    h(f's_add_u32 s67, s67, s68')
    h('s_mov_b32 s69, 0x1c71c71d')
    for i in range(9):
        h(f'v_add_u32 v20, {64*i}, v0')
        h('v_mul_hi_u32 v21, v20, s69')
        h('v_mul_u32_u24 v22, 9, v21')
        h('v_sub_u32 v22, v20, v22')
        h('v_mul_u32_u24 v21, 1152, v21')
        h(f'v_lshl_add_u32 v{24+i}, v22, 4, v21')
    h('s_barrier')
    for i in range(9):
        h(f's_add_u32 m0, s66, {i*1024}')
        h('s_nop 0')
        h(f'buffer_load_dwordx4 v{24+i}, s[{S_WO}:{S_WO+3}], s67 offen lds')
    h('v_lshrrev_b32 v1, 4, v0'); h('v_bfe_u32 v3, v0, 2, 2'); h('v_and_b32 v4, 3, v0')
    h('v_lshl_add_u32 v5, v1, 2, v3')
    h('v_mul_u32_u24 v5, 144, v5')
    h('v_lshl_add_u32 v6, v4, 3, v5')
    h('v_add_u32 v6, s66, v6')
    h('v_and_b32 v7, 1, v4'); h('v_lshlrev_b32 v7, 3, v7')
    h('v_lshrrev_b32 v8, 1, v4'); h(f'v_mul_u32_u24 v8, {32*144}, v8')
    h('v_add3_u32 v7, v5, v7, v8')
    h('v_add_u32 v7, 128, v7')
    h('v_add_u32 v7, s66, v7')
    h('s_lshl_b32 s68, s64, 6'); h('s_add_u32 s68, s68, s65'); h('s_mul_i32 s68, s68, 9216')
    h('v_lshlrev_b32 v9, 4, v0'); h('v_add_u32 v9, s68, v9')
    for t in range(1, 4): h('s_barrier')
    h('s_waitcnt vmcnt(0)')
    for sp in range(2):
        for ct in range(4):
            f = 40 + 4*(sp*4+ct)
            o = sp*32*144 + ct*32
            h(f'ds_read_b64_tr_b16 {vr(f,2)}, v6 offset:{o}')
            h(f'ds_read_b64_tr_b16 {vr(f+2,2)}, v6 offset:{o + 16*144}')
    h(f'ds_read_b64_tr_b16 {vr(72,2)}, v7')
    h(f'ds_read_b64_tr_b16 {vr(74,2)}, v7 offset:{16*144}')
    h('s_waitcnt lgkmcnt(0)')
    for i in range(9):
        h(f's_mov_b32 s{S_SO}, {i*1024}')
        h(f'buffer_store_dwordx4 {vr(40+4*i,4)}, v9, s[{S_WB}:{S_WB+3}], s{S_SO} offen')
    for t in range(4, 32): h('s_barrier')
    p.extend(fix_hazards(h.L))

def gen_B():
    p = Prog()
    common_prologue(p, 'LB_done')
    p(f's_and_b32 s{S_T0}, s2, 7')
    p(f's_lshr_b32 s{S_T1}, s2, 3')
    p(f's_and_b32 s{S_B}, s{S_T0}, 3')
    p(f's_lshl_b32 s{S_B}, s{S_B}, 3')
    p(f's_and_b32 s{S_T2}, s{S_T1}, 7')
    p(f's_add_u32 s{S_B}, s{S_B}, s{S_T2}')
    p(f's_lshr_b32 s{S_HKV}, s{S_T0}, 2')
    p(f's_lshl_b32 s{S_HKV}, s{S_HKV}, 2')
    p(f's_lshr_b32 s{S_T2}, s{S_T1}, 3')
    p(f's_add_u32 s{S_HKV}, s{S_HKV}, s{S_T2}')
    p('s_waitcnt lgkmcnt(0)')
    srd(p, S_OA, P_WS, P_WS+1, OA_BYTES)
    p(f's_add_u32 s{P_WS}, s{P_WS}, {WB_OFF}')
    p(f's_addc_u32 s{P_WS+1}, s{P_WS+1}, 0')
    srd(p, S_WB, P_WS, P_WS+1, WB_BYTES)
    srd(p, S_K, P_OUT, P_OUT+1, 1536*576*2)
    gen_tail(p)
    p('LB_done:')
    p('s_endpgm')
    return p

def gen_tail(p):
    c = Prog()
    ACC = lambda ct, qt: 4*(ct*3+qt)
    BUF = lambda par: 72 + 60*par
    c(f's_mul_i32 s{S_T0}, s{S_B}, 393216')
    c(f's_mul_i32 s{S_T1}, s{S_W}, {8*6144}')
    c(f's_add_u32 s{S_T0}, s{S_T0}, s{S_T1}')
    c(f's_mul_i32 s{S_T2}, s{S_HKV}, 589824')
    c(f's_mul_i32 s{S_T1}, s{S_W}, {8*9216}')
    c(f's_add_u32 s{S_T2}, s{S_T2}, s{S_T1}')
    c('v_lshlrev_b32 v200, 4, v0')
    c(f'v_add_u32 v201, s{S_T0}, v200')
    c(f'v_add_u32 v202, s{S_T2}, v200')
    c('v_mov_b32 v203, v0')
    def loads(i):
        b = BUF(i % 2); out = []
        for f in range(9):
            out.append(parse(f's_mov_b32 s{S_SO}, {i*9216 + f*1024}'))
            out.append(parse(f'buffer_load_dwordx4 {vr(b+24+4*f,4)}, v202, s[{S_WB}:{S_WB+3}], s{S_SO} offen'))
        for f in range(6):
            out.append(parse(f's_mov_b32 s{S_SO}, {i*6144 + f*1024}'))
            out.append(parse(f'buffer_load_dwordx4 {vr(b+4*f,4)}, v201, s[{S_OA}:{S_OA+3}], s{S_SO} offen'))
        return out
    c.extend(loads(0))
    for i in range(8):
        b = BUF(i % 2)
        mfs = []
        for sp in range(2):
            for ct in range(5):
                W = b + 24 + 4*(sp*4+ct) if ct < 4 else b + 24 + 32
                a = ct if ct < 4 else 4 + sp
                for qt in range(3):
                    first = (i == 0 and (sp == 0 or ct == 4))
                    mfs.append(mf(ACC(a,qt), W, b + 4*(sp*3+qt), '0' if first else ACC(a,qt)))
        if i < 7:
            c.extend(loads(i+1))
        c.extend(mfs)
    c('v_cmp_gt_u32 vcc, 32, v203')
    for qt in range(3):
        for r in range(4):
            c(f'v_cndmask_b32 v{ACC(4,qt)+r}, v{ACC(5,qt)+r}, v{ACC(4,qt)+r}, vcc')
    c(f's_mul_i32 s{S_T0}, s{S_W}, {15*1024}')
    c(f'v_add_u32 v204, s{S_T0}, v200')
    for ct in range(5):
        for qt in range(3):
            c(f'ds_write_b128 v204, {vr(ACC(ct,qt),4)} offset:{(ct*3+qt)*1024}')
    c('s_waitcnt lgkmcnt(0)')
    c('s_barrier')
    def sum_tile(tile_s, dst):
        c(f's_lshl_b32 s{S_T0}, s{tile_s}, 10')
        c(f'v_add_u32 v205, s{S_T0}, v200')
        for w in range(8):
            c(f'ds_read_b128 {vr(8+4*w,4)}, v205 offset:{w*15*1024}' if w*15*1024 < 65536 else '')
        return
    c('v_add_u32 v206, 61440, v200')
    def reduce_into(tile_s, dst):
        c(f's_lshl_b32 s{S_T0}, s{tile_s}, 10')
        c(f'v_add_u32 v205, s{S_T0}, v200')
        c(f'v_add_u32 v207, s{S_T0}, v206')
        for w in range(8):
            if w < 4: c(f'ds_read_b128 {vr(dst+4*w,4)}, v205 offset:{w*15360}')
            else:     c(f'ds_read_b128 {vr(dst+4*w,4)}, v207 offset:{(w-4)*15360}')
        for r in range(4):
            c(f'v_add_f32 v{dst+r}, v{dst+r}, v{dst+4+r}')
            c(f'v_add_f32 v{dst+8+r}, v{dst+8+r}, v{dst+12+r}')
            c(f'v_add_f32 v{dst+16+r}, v{dst+16+r}, v{dst+20+r}')
            c(f'v_add_f32 v{dst+24+r}, v{dst+24+r}, v{dst+28+r}')
        for r in range(4):
            c(f'v_add_f32 v{dst+r}, v{dst+r}, v{dst+8+r}')
            c(f'v_add_f32 v{dst+16+r}, v{dst+16+r}, v{dst+24+r}')
        for r in range(4):
            c(f'v_add_f32 v{dst+r}, v{dst+r}, v{dst+16+r}')
    c('v_and_b32 v210, 15, v203')
    c('v_lshrrev_b32 v211, 4, v203')
    c(f's_mul_i32 s{S_T2}, s{S_B}, {48*1152}')
    c(f's_mul_i32 s{S_T3}, s{S_HKV}, 144')
    c(f's_add_u32 s{S_T2}, s{S_T2}, s{S_T3}')
    c('v_mul_u32_u24 v212, 1152, v210')
    c('v_lshl_add_u32 v212, v211, 3, v212')
    c(f'v_add_u32 v212, s{S_T2}, v212')
    def store_tile(tile_s, dst, half):
        c(f's_mul_i32 s64, s{tile_s}, 86'); c('s_lshr_b32 s64, s64, 8')
        c(f's_mul_i32 s65, s64, 3'); c(f's_sub_u32 s65, s{tile_s}, s65')
        c(f's_mul_i32 s65, s65, {16*1152}'); c('s_lshl_b32 s64, s64, 5'); c('s_add_u32 s64, s64, s65')
        c(f'v_cvt_pk_bf16_f32 v{dst}, v{dst}, v{dst+1}')
        c(f'v_cvt_pk_bf16_f32 v{dst+1}, v{dst+2}, v{dst+3}')
        c(f'buffer_store_dwordx2 {vr(dst,2)}, v212, s[{S_K}:{S_K+3}], s64 offen')
    c(f's_mov_b32 s66, s{S_W}')
    reduce_into(66, 8)
    store_tile(66, 8, False)
    c(f's_cmp_eq_u32 s{S_W}, 7'); c('s_cbranch_scc1 LB_done')
    c(f's_add_u32 s66, s{S_W}, 8')
    reduce_into(66, 48)
    c(f's_cmp_ge_u32 s{S_W}, 4'); c('s_cbranch_scc1 LB_half')
    store_tile(66, 48, False)
    c('s_branch LB_done')
    c('LB_half:')
    for r in range(4):
        c(f'v_mov_b32 v{56+r}, v{48+r}')
    for r in range(4):
        c(f'v_permlane32_swap_b32 v{48+r}, v{56+r}')
    for r in range(4):
        c(f'v_add_f32 v{48+r}, v{48+r}, v{56+r}')
    c('v_cmp_gt_u32 vcc, 32, v203')
    c('s_and_saveexec_b64 s[70:71], vcc')
    store_tile(66, 48, True)
    L = auto_wait(c.L)
    L = fix_hazards(L)
    p.extend(L)

def kd(name, nv=256, ns=96):
    return f'''.amdhsa_kernel {name}
  .amdhsa_next_free_vgpr {nv}
  .amdhsa_next_free_sgpr {ns}
  .amdhsa_accum_offset {nv}
  .amdhsa_group_segment_fixed_size 0
  .amdhsa_kernarg_size 64
  .amdhsa_user_sgpr_count 2
  .amdhsa_user_sgpr_kernarg_segment_ptr 1
  .amdhsa_system_sgpr_workgroup_id_x 1
.end_amdhsa_kernel'''

def main(out):
    hdr = open('cdna_kernels/' + NAME + '.s.ref').read().split('\n')
    lay = [l for l in hdr if l.startswith(';') and '@launch' not in l and 'Override' not in l and 'grid=ceil' not in l]
    A = gen_A(); B = gen_B()
    ka, kb = 'gqa_attn_kernel', 'gqa_oproj_kernel'
    t = '\n'.join(lay) + '\n'
    t += f'; @launch kernel={ka} grid=(256,1,1) block=(512,1,1) lds={LDS_A}\n'
    t += f'; @launch kernel={kb} grid=(256,1,1) block=(512,1,1) lds={8*15*1024}\n'
    t += '.amdgcn_target "amdgcn-amd-amdhsa--gfx950"\n.text\n'
    for name, P in ((ka, A), (kb, B)):
        t += f'.globl {name}\n.p2align 8\n.type {name},@function\n{name}:\n' + P.text() + '\n'
    t += '.section .rodata,"a"\n.p2align 6\n' + kd(ka) + '\n.p2align 6\n' + kd(kb) + '\n'
    open(out, 'w').write(t)

if __name__ == '__main__':
    main(sys.argv[1] if len(sys.argv) > 1 else 'cdna_kernels/' + NAME + '.s')
```
